```python
import torch

def _softmax(x, axis=-1):
    return torch.softmax(x, dim=axis)
def _gelu(x):
    return torch.nn.functional.gelu(x, approximate="tanh")
def _silu(x):
    return torch.nn.functional.silu(x)
def _sigmoid(x):
    return torch.sigmoid(x)
def _layernorm(x, axis=-1, eps=1e-5):
    m = x.mean(dim=axis, keepdim=True)
    v = x.var(dim=axis, keepdim=True, unbiased=False)
    return (x - m) / torch.sqrt(v + eps)
def _scatter_add(tgt, idx, src, axis=0):
    return tgt.clone().index_add_(axis, idx, src)
def _segment_sum(src, seg, n):
    out = torch.zeros((n,) + src.shape[1:], dtype=src.dtype)
    return out.index_add_(0, seg, src)
def _pad(x, pw):
    flat = tuple(v for pair in reversed(pw) for v in pair)
    return torch.nn.functional.pad(x, flat)

kernel_name = 'parallel_sum__sliding_block_cached__mixer_channel_mlp__decode'

def setup_inputs():

    _w = (lambda a: (lambda t: t.to(torch.bfloat16) if t.is_floating_point() else t)(torch.as_tensor(a)))
    def _A_setup():
        B, Sq, D = 1, 1, 1024
        Hq, Hkv, Sk, Dh = 32, 4, 65536, 128
        assert Hq % Hkv == 0, (Hq, Hkv)
        return {
            "x": _w((lambda *s: torch.randn(*s, dtype=torch.bfloat16) * 0.05)(B, Sq, D)),
            "k_cache": _w((lambda *s: torch.randn(*s, dtype=torch.bfloat16) * 3.2)(B, Hkv, Sk, Dh)),
            "v_cache": _w((lambda *s: torch.randn(*s, dtype=torch.bfloat16) * 0.4)(B, Hkv, Sk, Dh)),
            "wq": _w((lambda *s: torch.randn(*s, dtype=torch.bfloat16) * 3.2)(D, Hq * Dh) * (D ** -0.5)),
            "wo": _w((lambda *s: torch.randn(*s, dtype=torch.bfloat16) * 0.4)(Hq * Dh, D) * ((Hq * Dh) ** -0.5)),
        }
    _A_in = _A_setup()

    def _B_setup():
        B, S, D, F = 1, 1, 1024, 3584
        return {
            "x": _w((lambda *s: torch.randn(*s, dtype=torch.bfloat16) * 0.05)(B, S, D)),
            "w1": _w((lambda *s: torch.randn(*s, dtype=torch.bfloat16) * 1.6)(D, F) * (D ** -0.5)),
            "b1": _w((lambda *s: torch.randn(*s, dtype=torch.bfloat16) * 1.6)(F)),
            "w2": _w((lambda *s: torch.randn(*s, dtype=torch.bfloat16) * 0.1)(F, D) * (F ** -0.5)),
            "b2": _w((lambda *s: torch.randn(*s, dtype=torch.bfloat16) * 0.1)(D)),
        }
    _B_in = _B_setup()

    return {
        "A_x": _A_in["x"],
        "A_k_cache": _A_in["k_cache"],
        "A_v_cache": _A_in["v_cache"],
        "A_wq": _A_in["wq"],
        "A_wo": _A_in["wo"],
        "B_x": _B_in["x"],
        "B_w1": _B_in["w1"],
        "B_b1": _B_in["b1"],
        "B_w2": _B_in["w2"],
        "B_b2": _B_in["b2"],
    }

def reference(A_x, A_k_cache, A_v_cache, A_wq, A_wo, B_x, B_w1, B_b1, B_w2, B_b2):
    def _A_ref(x, k_cache, v_cache, wq, wo):
        B, Sq, D = x.shape
        Hq, Dh = 32, 128
        Hkv, Sk = k_cache.shape[1], k_cache.shape[2]
        W = min(4096, max(256, Sk // 4))
        rep = Hq // Hkv
        q = (lambda x, *d: x.permute(*d))((x @ wq).reshape(B, Sq, Hq, Dh), 0, 2, 1, 3)
        k = (lambda x, n, axis: torch.repeat_interleave(x, n, dim=axis))(k_cache[:, :, Sk - W:, :], rep, axis=1)
        v = (lambda x, n, axis: torch.repeat_interleave(x, n, dim=axis))(v_cache[:, :, Sk - W:, :], rep, axis=1)
        scores = torch.einsum("bhqd,bhkd->bhqk", q, k) * (Dh ** -0.5)
        p = _softmax(scores, axis=-1)
        o = torch.einsum("bhqk,bhkd->bhqd", p, v)
        return (lambda x, *d: x.permute(*d))(o, 0, 2, 1, 3).reshape(B, Sq, Hq * Dh) @ wo

    def _B_ref(x, w1, b1, w2, b2):
        y = _layernorm(x, axis=-1)
        h = _gelu(torch.einsum("bsd,df->bsf", y, w1) + b1)
        return torch.einsum("bsf,fd->bsd", h, w2) + b2

    x = A_x
    xn = _layernorm(x, axis=-1)
    return x + _A_ref(xn, A_k_cache, A_v_cache, A_wq, A_wo) + _B_ref(xn, B_w1, B_b1, B_w2, B_b2)
```

```python
import sys
out, REC, SLP, EARLY, JIT = sys.argv[1], int(sys.argv[2]), int(sys.argv[3]), int(sys.argv[4]), int(sys.argv[5])
PRE = sys.argv[6] if len(sys.argv) > 6 else ''
HS = sys.argv[7] if len(sys.argv) > 7 else "sc1"
HL = sys.argv[8] if len(sys.argv) > 8 else "sc1"
KN = "parallel_sum__sliding_block_cached__mixer_channel_mlp__decode_kernel"
L = []
def e(s): L.append("    " + s)
def lab(s): L.append(s + ":")
WS_FP = 0x200000
lr = 6 if REC == 64 else 7
L.append(f"; @launch grid=(256,1,1) block=(320,1,1) lds=0")
L.append('.amdgcn_target "amdgcn-amd-amdhsa--gfx950"\n.text\n.globl %s\n.p2align 8\n.type %s,@function\n%s:' % (KN, KN, KN))
e("s_memrealtime s[70:71]")
e("s_cmp_ge_u32 s2, 256"); e("s_cbranch_scc1 L_end")
e("s_load_dwordx2 s[40:41], s[0:1], 96")
e("v_lshrrev_b32 v1, 6, v0"); e("v_and_b32 v0, 63, v0"); e("s_nop 0")
e("v_readfirstlane_b32 s3, v1")
e("s_waitcnt lgkmcnt(0)")
e("s_mov_b32 s48, s40"); e("s_mov_b32 s49, s41"); e(f"s_mov_b32 s50, {256<<20}"); e("s_mov_b32 s51, 0x00020000")
e("s_add_u32 s44, s70, 400"); e("s_or_b32 s44, s44, 1023"); e("s_add_u32 s44, s44, 1")
e("s_and_b32 s4, s2, 7"); e("s_lshr_b32 s5, s2, 3"); e("s_and_b32 s6, s5, 1")
e("s_lshl_b32 s7, s4, 4"); e("s_lshr_b32 s10, s5, 1"); e("s_add_u32 s7, s7, s10")
e("s_and_b32 s9, s7, 1"); e("s_lshr_b32 s8, s7, 1")
e("s_lshl_b32 s12, s6, 6"); e("s_add_u32 s12, s12, s8")
e("s_cmp_eq_u32 s3, 4"); e("s_cbranch_scc1 L_cons")
e("v_lshrrev_b32 v1, 4, v0"); e("v_and_b32 v2, 15, v0")
e("s_lshl_b32 s10, s9, 6"); e("s_lshl_b32 s61, s3, 4"); e("s_add_u32 s10, s10, s61")
e("v_add_u32 v2, s10, v2"); e(f"v_lshlrev_b32 v9, {7+lr}, v2"); e("v_lshl_add_u32 v9, v1, 4, v9")
e(f"s_lshl_b32 s61, s12, {lr}"); e(f"s_add_u32 s61, s61, {WS_FP}")
if PRE == "st":
    for k in range(4): e(f"v_mov_b32 v{44+k}, 0")
    e(f"buffer_store_dwordx4 v[44:47], v9, s[48:51], s61 offen {HS}")
if PRE == "tl":
    e("s_add_u32 s62, s61, 0x100000")
    for k in range(4): e(f"v_mov_b32 v{44+k}, 0")
    e(f"buffer_store_dwordx4 v[44:47], v9, s[48:51], s62 offen {HS}")
if PRE == "t1":
    e("v_mov_b32 v44, 0"); e("s_mov_b32 s62, 0x3ff000")
    e(f"buffer_load_dword v45, v44, s[48:51], s62 offen {HL}")
if PRE == "ld":
    e(f"buffer_load_dwordx4 v[44:47], v9, s[48:51], s61 offen {HL}")
for k in range(4): e(f"v_mov_b32 v{40+k}, s44")
e("s_mov_b32 s45, s44")
if JIT:
    e("s_and_b32 s10, s12, 7"); e(f"s_mul_i32 s10, s10, {JIT}"); e("s_sub_u32 s45, s44, s10")
lab("L_w1")
e("s_memrealtime s[68:69]"); e("s_waitcnt lgkmcnt(0)")
e("s_sub_u32 s10, s68, s45"); e("s_cmp_lt_i32 s10, 0"); e("s_cbranch_scc1 L_w1")
e(f"buffer_store_dwordx4 v[40:43], v9, s[48:51], s61 offen {HS}")
e("s_waitcnt vmcnt(0)")
e("s_memrealtime s[68:69]"); e("s_waitcnt lgkmcnt(0)")
e("s_cmp_eq_u32 s3, 0"); e("s_cbranch_scc0 L_end")
e("v_mov_b32 v4, s70"); e("v_mov_b32 v5, s68"); e("v_mov_b32 v6, 0"); e("v_mov_b32 v7, 0")
e("s_mul_i32 s68, s2, 192"); e(f"s_add_u32 s68, s68, {(128<<20) + 128}")
e("v_mov_b32 v1, 0"); e("s_mov_b64 exec, 1")
e("buffer_store_dwordx4 v[4:7], v1, s[48:51], s68 offen")
e("s_endpgm")
lab("L_cons")
e("s_mov_b32 s60, 0")
e("s_cmp_eq_u32 s6, 0"); e("s_cbranch_scc1 L_done")
e("v_lshrrev_b32 v4, 2, v0"); e(f"v_lshlrev_b32 v4, {lr}, v4"); e("v_and_b32 v1, 3, v0"); e("v_lshl_add_u32 v4, v1, 4, v4")
e(f"s_lshl_b32 s52, s7, {7+lr}"); e(f"s_add_u32 s52, s52, {WS_FP}")
for j in range(1, 8): e(f"s_add_u32 s{52+j}, s52, {j*16*REC}")
e(f"s_sub_u32 s45, s44, {EARLY//10}")
lab("L_w2")
e("s_memrealtime s[68:69]"); e("s_waitcnt lgkmcnt(0)")
e("s_sub_u32 s10, s68, s45"); e("s_cmp_lt_i32 s10, 0"); e("s_cbranch_scc1 L_w2")
lab("L_poll")
for j in range(8):
    e(f"buffer_load_dwordx4 v[{16+4*j}:{19+4*j}], v4, s[48:51], s{52+j} offen {HL}")
e("s_add_u32 s60, s60, 1")
e("s_cmp_ge_u32 s60, 3000"); e("s_cbranch_scc1 L_done")
e("s_waitcnt vmcnt(0)")
e("v_min3_u32 v10, v17, v19, s44"); e("v_max3_u32 v11, v17, v19, s44")
for j in range(1, 8):
    e(f"v_min3_u32 v10, v10, v{17+4*j}, v{19+4*j}"); e(f"v_max3_u32 v11, v11, v{17+4*j}, v{19+4*j}")
e("v_cmp_ne_u32 vcc, v10, v11")
e("s_cbranch_vccz L_done")
if SLP: e(f"s_sleep {SLP}")
e("s_branch L_poll")
lab("L_done")
e("s_memrealtime s[68:69]"); e("s_waitcnt lgkmcnt(0)")
e("v_mov_b32 v4, s44"); e("v_mov_b32 v5, s68"); e("v_mov_b32 v6, s60"); e("v_mov_b32 v7, 0")
e("s_mul_i32 s68, s2, 192"); e(f"s_add_u32 s68, s68, {(128<<20)}")
e("v_mov_b32 v1, 0"); e("s_mov_b64 exec, 1")
e("buffer_store_dwordx4 v[4:7], v1, s[48:51], s68 offen")
lab("L_end")
e("s_endpgm")
L.append(f""".section .rodata,"a"
.p2align 6
.amdhsa_kernel {KN}
  .amdhsa_next_free_vgpr 64
  .amdhsa_next_free_sgpr 96
  .amdhsa_accum_offset 64
  .amdhsa_group_segment_fixed_size 0
  .amdhsa_kernarg_size 104
  .amdhsa_user_sgpr_count 2
  .amdhsa_user_sgpr_kernarg_segment_ptr 1
  .amdhsa_system_sgpr_workgroup_id_x 1
.end_amdhsa_kernel""")
open(out, "w").write("\n".join(L) + "\n")
```
